```python
import torch

def _softmax(x, axis=-1):
    return torch.softmax(x, dim=axis)
def _gelu(x):
    return torch.nn.functional.gelu(x, approximate="tanh")
def _silu(x):
    return torch.nn.functional.silu(x)
def _sigmoid(x):
    return torch.sigmoid(x)
def _layernorm(x, axis=-1, eps=1e-5):
    m = x.mean(dim=axis, keepdim=True)
    v = x.var(dim=axis, keepdim=True, unbiased=False)
    return (x - m) / torch.sqrt(v + eps)
def _scatter_add(tgt, idx, src, axis=0):
    return tgt.clone().index_add_(axis, idx, src)
def _segment_sum(src, seg, n):
    out = torch.zeros((n,) + src.shape[1:], dtype=src.dtype)
    return out.index_add_(0, seg, src)
def _pad(x, pw):
    flat = tuple(v for pair in reversed(pw) for v in pair)
    return torch.nn.functional.pad(x, flat)

kernel_name = 'parallel_sum__softmax_full_mha__glu_gated_geglu__prompt'

def setup_inputs():

    _w = (lambda a: (lambda t: t.to(torch.bfloat16) if t.is_floating_point() else t)(torch.as_tensor(a)))
    def _A_setup():
        B, S, D = 1, 2048, 512
        return {
            "x": _w((lambda *s: torch.randn(*s, dtype=torch.bfloat16) * 0.05)(B, S, D)),
            "wqkv": _w((lambda *s: torch.randn(*s, dtype=torch.bfloat16) * 0.05)(D, 3 * D)),
            "wo": _w((lambda *s: torch.randn(*s, dtype=torch.bfloat16) * 0.05)(D, D)),
        }
    _A_in = _A_setup()

    def _B_setup():
        B, S, Dm, Df = 1, 2048, 512, 1792
        return {
            "x": _w((lambda *s: torch.randn(*s, dtype=torch.bfloat16) * 0.05)(B, S, Dm)),
            "w_gate": _w((lambda *s: torch.randn(*s, dtype=torch.bfloat16) * 0.4)(Dm, Df) * (Dm ** -0.5)),
            "w_up": _w((lambda *s: torch.randn(*s, dtype=torch.bfloat16) * 0.4)(Dm, Df) * (Dm ** -0.5)),
            "w_down": _w((lambda *s: torch.randn(*s, dtype=torch.bfloat16) * 0.4)(Df, Dm) * (Df ** -0.5)),
        }
    _B_in = _B_setup()

    return {
        "A_x": _A_in["x"],
        "A_wqkv": _A_in["wqkv"],
        "A_wo": _A_in["wo"],
        "B_x": _B_in["x"],
        "B_w_gate": _B_in["w_gate"],
        "B_w_up": _B_in["w_up"],
        "B_w_down": _B_in["w_down"],
    }

def reference(A_x, A_wqkv, A_wo, B_x, B_w_gate, B_w_up, B_w_down):
    def _A_ref(x, wqkv, wo):
        B, S, D = x.shape
        H = 32; Dh = D // H
        qkv = (lambda x, *d: x.permute(*d))((x @ wqkv).reshape(B, S, 3, H, Dh), 2, 0, 3, 1, 4)
        q, k, v = qkv[0], qkv[1], qkv[2]
        scale = Dh ** -0.5
        scores = torch.einsum("bhqd,bhkd->bhqk", q, k) * scale
        p = _softmax(scores, axis=-1)
        o = torch.einsum("bhqk,bhkd->bhqd", p, v)
        return (lambda x, *d: x.permute(*d))(o, 0, 2, 1, 3).reshape(B, S, D) @ wo

    def _B_ref(x, w_gate, w_up, w_down):
        g = torch.einsum("bsd,df->bsf", x, w_gate)
        u = torch.einsum("bsd,df->bsf", x, w_up)
        h = _gelu(g) * u
        return torch.einsum("bsf,fd->bsd", h, w_down)

    x = A_x
    xn = _layernorm(x, axis=-1)
    return x + _A_ref(xn, A_wqkv, A_wo) + _B_ref(xn, B_w_gate, B_w_up, B_w_down)
```

```python
import re

TRANS = ("v_exp_f32", "v_log_f32", "v_rcp_f32", "v_rsq_f32", "v_sqrt_f32", "v_sin_f32", "v_cos_f32", "v_exp_f16", "v_rcp_f16")

def expand(op):
    op = op.strip()
    op = re.sub(r"^-", "", op)
    m = re.match(r"^abs\((.*)\)$", op)
    if m: op = m.group(1)
    m = re.match(r"^\|(.*)\|$", op)
    if m: op = m.group(1)
    m = re.match(r"^([vas])\[(\d+):(\d+)\]$", op)
    if m:
        return [(m.group(1), i) for i in range(int(m.group(2)), int(m.group(3)) + 1)]
    m = re.match(r"^([vas])(\d+)$", op)
    if m:
        return [(m.group(1), int(m.group(2)))]
    if op in ("vcc", "vcc_lo", "vcc_hi"): return [("vcc", 0)]
    if op in ("exec", "exec_lo", "exec_hi"): return [("exec", 0)]
    if op == "m0": return [("m0", 0)]
    return []

class Ins:
    __slots__ = ("text", "mn", "kind", "reads", "writes", "ops", "label", "target", "srcc", "srcab", "passes", "states", "tag", "data")
    def __init__(self, text):
        self.text = text.strip()
        self.label = None; self.target = None
        self.reads = set(); self.writes = set(); self.srcc = set(); self.srcab = set(); self.data = set()
        self.passes = 0; self.states = 1; self.tag = None
        t = self.text.split(";")[0].strip()
        if t.endswith(":"):
            self.kind = "label"; self.label = t[:-1]; self.mn = ""; self.states = 0; self.ops = []
            return
        if t.startswith(".") or not t:
            self.kind = "directive"; self.mn = t; self.states = 0; self.ops = []
            return
        parts = t.split(None, 1)
        mn = parts[0]; self.mn = mn
        rest = parts[1] if len(parts) > 1 else ""
        ops = [o.strip() for o in rest.split(",")] if rest else []
        mods = []
        if ops:
            joined = []
            depth = 0; cur = ""
            for ch in rest:
                if ch == "[": depth += 1
                if ch == "]": depth -= 1
                if ch == "," and depth == 0:
                    joined.append(cur.strip()); cur = ""
                else: cur += ch
            joined.append(cur.strip())
            last = joined[-1].split()
            mods = last[1:]
            joined[-1] = last[0] if last else ""
            ops = joined
        self.ops = ops
        R = lambda o: set(expand(o))
        if mn.startswith("v_mfma"):
            self.kind = "mfma"
            self.writes = R(ops[0]); self.srcab = R(ops[1]) | R(ops[2]); self.srcc = R(ops[3])
            self.reads = self.srcab | self.srcc | {("exec", 0)}
            self.passes = 8 if "32x32x16" in mn else 4
        elif mn.startswith("v_cmpx"):
            self.kind = "valu"; self.writes = R(ops[0]) | {("exec", 0)}
            for o in ops[1:]: self.reads |= R(o)
        elif mn.startswith("v_cmp"):
            self.kind = "valu"; self.writes = R(ops[0])
            for o in ops[1:]: self.reads |= R(o)
        elif mn.startswith("v_permlane") and "swap" in mn:
            self.kind = "valu"; self.writes = R(ops[0]) | R(ops[1]); self.reads = set(self.writes)
        elif mn.startswith("v_"):
            self.kind = "trans" if mn.replace("_e32", "").replace("_e64", "") in TRANS else "valu"
            self.writes = R(ops[0])
            start = 1
            if mn.startswith(("v_add_co", "v_sub_co", "v_addc_co", "v_subb_co", "v_subrev_co", "v_mad_u64_u32", "v_div_scale")):
                self.writes |= R(ops[1]); start = 2
            for o in ops[start:]: self.reads |= R(o)
            if mn.startswith(("v_fmac", "v_dot2c", "v_mac", "v_writelane")) or "dpp" in mn or any(m.startswith(("quad_perm", "row_", "wave_")) for m in mods):
                self.reads |= R(ops[0])
            if mn.startswith("v_cndmask") and len(ops) == 3: self.reads.add(("vcc", 0))
            if any(m.startswith(("quad_perm", "row_", "wave_")) for m in mods): self.tag = "dpp"
        elif mn.startswith(("buffer_load", "global_load", "flat_load")):
            if "lds" in mods or mn.startswith("global_load_lds"):
                self.kind = "dma"
                for o in ops: self.reads |= R(o)
                self.reads.add(("m0", 0))
            else:
                self.kind = "vload"; self.writes = R(ops[0])
                for o in ops[1:]: self.reads |= R(o)
        elif mn.startswith(("buffer_store", "buffer_atomic")):
            self.kind = "vstore"
            for o in ops: self.reads |= R(o)
            self.data = R(ops[0])
            if mn.startswith("buffer_atomic") and "sc0" in mods: self.writes = R(ops[0])
        elif mn.startswith(("global_store", "global_atomic")):
            self.kind = "vstore"
            for o in ops: self.reads |= R(o)
            self.data = R(ops[1])
        elif mn.startswith(("buffer_wbl2", "buffer_inv")):
            self.kind = "vstore"
        elif mn.startswith(("ds_read", "ds_bpermute", "ds_permute", "ds_swizzle")) or (mn.startswith("ds_") and "_rtn" in mn):
            self.kind = "dsread"; self.writes = R(ops[0])
            for o in ops[1:]: self.reads |= R(o)
        elif mn.startswith("ds_"):
            self.kind = "dswrite"
            for o in ops: self.reads |= R(o)
        elif mn == "s_nop":
            self.kind = "nop"; self.states = int(ops[0], 0) + 1
        elif mn == "s_waitcnt":
            self.kind = "wait"
        elif mn.startswith(("s_cbranch", "s_branch")):
            self.kind = "branch"; self.target = ops[0]
            if "vcc" in mn: self.reads.add(("vcc", 0))
            if "exec" in mn: self.reads.add(("exec", 0))
        elif mn == "s_endpgm":
            self.kind = "end"
        elif mn.startswith(("s_load", "s_memtime", "s_memrealtime", "s_buffer_load")):
            self.kind = "smem"; self.writes = R(ops[0])
            for o in ops[1:]: self.reads |= R(o)
        elif mn.startswith(("s_cmp", "s_bitcmp")):
            self.kind = "salu"
            for o in ops: self.reads |= R(o)
        elif mn.startswith(("s_barrier", "s_setprio", "s_sleep", "s_sethalt", "s_setreg", "s_icache")):
            self.kind = "sother"
        elif mn.startswith("s_"):
            self.kind = "salu"; self.writes = R(ops[0]) if ops else set()
            for o in ops[1:]: self.reads |= R(o)
            if "saveexec" in mn: self.writes.add(("exec", 0)); self.reads.add(("exec", 0))
        else:
            raise ValueError("unknown instruction: " + text)

    @property
    def is_valu(self): return self.kind in ("valu", "trans")
    @property
    def is_vmem(self): return self.kind in ("vload", "vstore", "dma")
    def vregs(self, s): return {r for r in s if r[0] in ("v", "a")}

def sg(s): return {r for r in s if r[0] in ("s", "vcc")}

def hazard(p, c):
    need = 0
    pv = p.vregs(p.writes)
    if p.is_valu:
        isdot = p.mn.startswith("v_dot")
        if c.kind == "mfma" and pv & c.reads: need = max(need, 3 if isdot else 2)
        if c.is_valu:
            if p.kind == "trans" and c.kind != "trans" and pv & c.reads: need = max(need, 1)
            if c.mn.startswith("v_permlane") and pv & c.reads: need = max(need, 2)
            if c.mn.startswith(("v_readlane", "v_readfirstlane")) and pv & c.reads: need = max(need, 1)
            if c.tag == "dpp" and pv & c.reads: need = max(need, 2)
            if sg(p.writes) & c.reads:
                need = max(need, 4 if c.mn.startswith(("v_readlane", "v_writelane")) else 2)
            if ("exec", 0) in p.writes:
                if c.tag == "dpp": need = max(need, 5)
                if c.mn.startswith(("v_readlane", "v_readfirstlane", "v_writelane", "v_permlane")): need = max(need, 4)
            if isdot and pv & (c.reads | c.writes):
                same = (c.mn == p.mn)
                if same:
                    ab = set(expand(c.ops[1])) | set(expand(c.ops[2]))
                    if pv & ab: need = max(need, 3)
                else: need = max(need, 3)
            if "op_sel" in p.text and not p.mn.startswith("v_pk_") and pv & (c.reads | c.writes): need = max(need, 1)
            if "sdwa" in p.mn and pv & (c.reads | c.writes): need = max(need, 1)
        if isdot and (c.is_vmem or c.kind in ("dsread", "dswrite")) and pv & c.reads: need = max(need, 3)
        if c.is_vmem and sg(p.writes) & c.reads: need = max(need, 5)
        if c.kind == "mfma" and ("exec", 0) in p.writes: need = max(need, 4)
        if c.kind == "branch" and (sg(p.writes) | ({("exec",0)} & p.writes)) & c.reads: need = max(need, 5)
        if c.kind in ("salu",) and sg(p.writes) & c.reads: need = max(need, 1)
    if p.kind == "mfma":
        n = p.passes
        full = {4: 8, 8: 12}[n]; ovl = {4: 6, 8: 10}[n]; war = {4: 3, 8: 7}[n]
        if c.kind == "mfma":
            if pv & c.srcab: need = max(need, full)
            if pv & c.srcc:
                if not (pv == c.srcc and c.passes == n): need = max(need, ovl)
            elif pv & c.writes: need = max(need, ovl)
        elif c.is_valu:
            if pv & (c.reads | c.writes): need = max(need, full)
            if p.srcc & c.writes: need = max(need, war)
        elif c.is_vmem or c.kind in ("dsread", "dswrite"):
            if pv & (c.reads | c.writes): need = max(need, full)
    if p.kind == "salu" and ("m0", 0) in p.writes and (c.kind == "dma" or "addtid" in c.mn): need = max(need, 1)
    if p.kind == "vstore" and ("x4" in p.mn or "x3" in p.mn) and p.data & c.writes:
        need = max(need, 2 if c.is_valu else 1)
    if p.kind == "dswrite" and ("b128" in p.mn or "b96" in p.mn) and c.is_valu and p.reads & c.vregs(c.writes):
        need = max(need, 1)
    return need

MAXD = 14

def fix_hazards(ins, verbose=False):
    total = 0
    def build():
        labels = {x.label: i for i, x in enumerate(ins) if x.kind == "label"}
        preds = [[] for _ in ins]
        for i, x in enumerate(ins):
            if i + 1 < len(ins) and not (x.kind == "end" or x.mn == "s_branch"):
                preds[i + 1].append(i)
            if x.kind == "branch" and x.target in labels:
                preds[labels[x.target]].append(i)
        return preds
    preds = build()
    i = 0
    while i < len(ins):
        c = ins[i]
        if c.kind in ("label", "directive", "nop", "wait", "end", "sother"):
            i += 1; continue
        need = 0
        stack = [(p, 0) for p in preds[i]]
        seen = {}
        while stack:
            j, d = stack.pop()
            if d >= MAXD: continue
            if j in seen and seen[j] <= d: continue
            seen[j] = d
            p = ins[j]
            if p.kind not in ("label", "directive", "nop", "wait", "sother"):
                h = hazard(p, c)
                if h - d > need:
                    need = h - d; why = p
            for q in preds[j]: stack.append((q, d + p.states))
        if need > 0:
            if verbose: print(f"  nop {need}: [{why.text}] -> [{c.text}]")
            ins.insert(i, Ins(f"s_nop {need-1}"))
            total += need
            preds = build()
            i += 1
        i += 1
    return total

class Prog:
    def __init__(self):
        self.ins = []
        self.vm = []
        self.lg = []
        self._n = 0
    def __call__(self, text, tag=None):
        for line in text.strip().split("\n"):
            line = line.strip()
            if not line or line.startswith(";"): continue
            x = Ins(line)
            self.ins.append(x)
            if x.is_vmem: self.vm.append(tag)
            if x.kind in ("dsread", "dswrite"): self.lg.append(tag)
        return self
    def label(self, name): self(f"{name}:")
    def uniq(self, p="L"):
        self._n += 1
        return f"{p}_{self._n}"
    def _cnt(self, q, tag):
        idx = [i for i, t in enumerate(q) if t == tag or (isinstance(tag, (set, list, tuple)) and t in tag)]
        if not idx: return None
        return len(q) - 1 - max(idx)
    def wait_vm(self, tag):
        n = self._cnt(self.vm, tag)
        if n is None: return
        assert n <= 63, n
        self(f"s_waitcnt vmcnt({n})")
        self.vm = self.vm[len(self.vm) - n:] if n else []
    def wait_lg(self, tag):
        n = self._cnt(self.lg, tag)
        if n is None: return
        n2 = min(n, 15)
        self(f"s_waitcnt lgkmcnt({n2})")
        self.lg = self.lg[len(self.lg) - n2:] if n2 else []
    def wait_all(self, vm=True, lg=True):
        s = []
        if vm: s.append("vmcnt(0)"); self.vm = []
        if lg: s.append("lgkmcnt(0)"); self.lg = []
        self("s_waitcnt " + " ".join(s))
    def text(self, verbose=False):
        n = fix_hazards(self.ins, verbose)
        out = []
        for x in self.ins:
            out.append(x.text if x.kind in ("label", "directive") else "    " + x.text)
        return "\n".join(out) + "\n"
```

```python
import sys, math
from asmlib import *

NAME = "parallel_sum__softmax_full_mha__glu_gated_geglu__prompt"
QF  = 0x0000000
KVF = 0x0200000
HF  = 0x0600000
WDF = 0x0D00000
WOF = 0x0EC0000
OF  = 0x1000000
Y1  = 0x1200000
WS_SIZE = 0x1600000
LOG2E = 1.4426950408889634
def f2u(x):
    import struct
    return struct.unpack("<I", struct.pack("<f", x))[0]
C1 = -2.0 * LOG2E * math.sqrt(2.0 / math.pi)
C2 = C1 * 0.044715
QSCALE = 0.25 * LOG2E
STF = "sc1"

def cost(item):
    if callable(item): return 4
    if isinstance(item, list): return sum(cost(i) for i in item)
    t = item[0] if isinstance(item, tuple) else item
    return 8 if t.split()[0] in TRANS else 4

def emit(p, item):
    if callable(item): item()
    elif isinstance(item, list):
        for i in item: emit(p, i)
    elif isinstance(item, tuple): p(item[0], tag=item[1])
    else: p(item)

def spread(items, nslots):
    tot = sum(cost(i) for i in items)
    out = [[] for _ in range(nslots)]
    acc = 0.0
    for it in items:
        s = min(nslots - 1, int(acc * nslots / max(tot, 1)))
        out[s].append(it)
        acc += cost(it)
    return out

def srd(p, d, lo, size):
    p(f"s_mov_b32 s{d}, s{lo}")
    p(f"s_mov_b32 s{d+1}, s{lo+1}")
    p(f"s_mov_b32 s{d+2}, {size:#x}")
    p(f"s_mov_b32 s{d+3}, 0x00020000")

XB = 128
ACC = 32
def xf(ks): return f"v[{XB+4*ks}:{XB+4*ks+3}]"
def acc(t): return f"v[{ACC+16*t}:{ACC+16*t+15}]"
S_X, S_G, S_U, S_Q, S_WS, S_WD, S_WO, S_RP = 4, 8, 12, 16, 20, 24, 28, 52
PF = 3

def k1_path(p, mixed, pfx):
    V_LANE, V_WD, V_TR, V_L16, V_VST = 1, 2, 6, 12, 13
    V_NM, V_C1, V_C2, V_S2, V_SC = 14, 15, 16, 17, 18
    T = 19
    sW, sRB, sCG = 32, 33, 34
    sBase = [60, 61, 62, 63, 64]
    sM0a, sM0b, sT, sT2, sXo, sTT, sONE, sSELLO, sSELHI, sQKO, sGW = 65, 66, 67, 68, 69, 70, 71, 72, 73, 74, 75
    sD = 83
    if mixed:
        chunks = [("G", S_G, 3584), ("U", S_U, 3584), ("G", S_G, 3584), ("U", S_U, 3584), ("QK", S_Q, 3072)]
        accp = [0, 2, 4, 0, 2]
        steps = [(0,0),(1,0),(0,1),(1,1),(2,0),(2,1),(3,0),(3,1),(4,0),(4,1)]
    else:
        chunks = [("V", S_Q, 3072)] * 4 + [("QK", S_Q, 3072)]
        accp = [0, 2, 0, 2, 0]
        steps = [(0,0),(1,0),(0,1),(1,1),(2,0),(2,1),(3,0),(3,1),(4,0),(4,1)]
        accp = [0, 2, 4, 0, 2]
    A = ACC
    p(f"""
    v_lshrrev_b32 v{A+8}, 3, v{V_LANE}          ; r8
    v_and_b32 v{A+9}, 7, v{V_LANE}              ; p
    v_lshrrev_b32 v{A+10}, 1, v{A+8}            ; r8>>1
    v_xor_b32 v{A+11}, v{A+9}, v{A+10}          ; p ^ (r8>>1)
    v_lshlrev_b32 v{A+11}, 4, v{A+11}
    v_lshl_add_u32 v{A+0}, v{A+8}, 10, v{A+11}
    v_xor_b32 v{A+1}, 64, v{A+0}
    v_add_u32 v{A+1}, 7168, v{A+1}
    v_add_u32 v{A+2}, 14336, v{A+0}
    v_add_u32 v{A+3}, 14336, v{A+1}
    s_lshl_b32 s{sTT}, s{sRB}, 2
    s_add_u32 s{sTT}, s{sTT}, s{sW}
    s_lshl_b32 s{sXo}, s{sTT}, 15
    s_lshl_b32 s{sM0b}, s{sW}, 15
    s_mov_b32 m0, s{sM0b}
    """)
    p("s_waitcnt lgkmcnt(0)")
    srd(p, S_X, 36, 2048 * 1024)
    for j in range(8):
        for g in range(4):
            p(f"buffer_load_dwordx4 v{A+g}, s[{S_X}:{S_X+3}], s{sXo} offen offset:{g*1024} lds", tag=("x", j // 2))
        if j < 7:
            p(f"s_add_u32 m0, m0, 4096")
            p(f"s_add_u32 s{sXo}, s{sXo}, 128")
    srd(p, S_Q, 38, 512 * 3072)
    srd(p, S_G, 44, 512 * 3584)
    srd(p, S_U, 46, 512 * 3584)
    srd(p, S_WS, 50, WS_SIZE)
    srd(p, S_WD, 48, 1792 * 1024)
    srd(p, S_WO, 40, 512 * 1024)
    def wd_offsets(stride):
        return [
            f"v_lshrrev_b32 v{V_WD+1}, 3, v{V_LANE}",
            f"v_bfe_u32 v{V_WD+2}, v{V_LANE}, 4, 1",
            f"v_lshlrev_b32 v{V_WD+2}, 2, v{V_WD+2}",
            f"v_xor_b32 v{V_WD+2}, v{V_WD+2}, v{V_LANE}",
            f"v_and_b32 v{V_WD+2}, 7, v{V_WD+2}",
            f"v_lshlrev_b32 v{V_WD+2}, 4, v{V_WD+2}",
            f"v_mul_u32_u24 v{V_WD+1}, {stride}, v{V_WD+1}",
            f"v_add_u32 v{V_WD}, v{V_WD+1}, v{V_WD+2}",
            f"v_add_u32 v{V_WD+1}, {8*stride-1024}, v{V_WD}",
            f"v_add_u32 v{V_WD+2}, {2*(8*stride-1024)}, v{V_WD}",
            f"v_add_u32 v{V_WD+3}, {3*(8*stride-1024)}, v{V_WD}",
        ]
    for x in wd_offsets(chunks[0][2]): p(x)
    if mixed:
        p(f"""
        s_mul_i32 s{sT}, s{sW}, {64*3584}
        s_lshl_b32 s{sT2}, s{sCG}, 8
        s_add_u32 s{sBase[0]}, s{sT}, s{sT2}
        s_mov_b32 s{sBase[1]}, s{sBase[0]}
        s_add_u32 s{sBase[2]}, s{sBase[0]}, 128
        s_mov_b32 s{sBase[3]}, s{sBase[2]}
        s_mul_i32 s{sT}, s{sW}, {64*3072}
        s_lshl_b32 s{sT2}, s{sCG}, 7
        s_add_u32 s{sBase[4]}, s{sT}, s{sT2}
        """)
    else:
        p(f"""
        s_mul_i32 s{sT}, s{sW}, {64*3072}
        s_lshl_b32 s{sT2}, s{sCG}, 7
        s_add_u32 s{sBase[4]}, s{sT}, s{sT2}
        s_lshl_b32 s{sT2}, s{sCG}, 9
        s_add_u32 s{sT}, s{sT}, s{sT2}
        s_sub_u32 s{sBase[0]}, s{sT}, {(56-16)*128}
        s_add_u32 s{sBase[1]}, s{sBase[0]}, 128
        s_add_u32 s{sBase[2]}, s{sBase[0]}, 256
        s_add_u32 s{sBase[3]}, s{sBase[0]}, 384
        """)
    p(f"s_lshl_b32 s{sM0a}, s{sW}, 13")
    p(f"s_add_u32 s{sM0a}, s{sM0a}, 0x20000")

    def dma_items(s):
        c, hf = steps[s]
        _, sr, stride = chunks[c]
        pos = s % 5
        items = []
        for grp in range(2):
            if pos == 0: items.append(f"s_add_u32 m0, s{sM0a}, {grp*4096}")
            else: items.append(f"s_add_u32 m0, s{sM0b}, {(pos-1)*8192 + grp*4096}")
            items.append(f"s_add_u32 s{sD}, s{sBase[c]}, {(hf*256 + grp*32)*stride}")
            for j in range(4):
                items.append((f"buffer_load_dwordx4 v{V_WD+j}, s[{sr}:{sr+3}], s{sD} offen offset:{j*1024} lds", ("w", s)))
        return items
    for it in dma_items(0): emit(p, it)
    p(f"s_getpc_b64 s[56:57]")
    p.label(f"{pfx}_pc")
    p(f"v_lshlrev_b32 v{A+12}, 7, v0")
    p(f"v_min_u32 v{A+12}, {pfx}_end-{pfx}_pc, v{A+12}")
    p(f"global_load_dword v{A+13}, v{A+12}, s[56:57]", tag="pf")
    p(f"""
    v_and_b32 v{A+8}, 31, v{V_LANE}             ; t
    v_lshrrev_b32 v{A+9}, 5, v{V_LANE}          ; h
    v_bfe_u32 v{A+10}, v{V_LANE}, 1, 3          ; f(t)
    v_xor_b32 v{A+10}, v{A+10}, v{A+9}
    v_lshlrev_b32 v{A+10}, 4, v{A+10}
    v_lshl_add_u32 v{A+4}, v{A+8}, 7, v{A+10}
    v_add_u32 v{A+4}, s{sM0b}, v{A+4}
    v_xor_b32 v{A+5}, 32, v{A+4}
    v_xor_b32 v{A+6}, 64, v{A+4}
    v_xor_b32 v{A+7}, 96, v{A+4}
    v_lshlrev_b32 v{V_L16}, 4, v{V_LANE}
    v_bfe_u32 v{A+8}, v{V_LANE}, 2, 2           ; r
    v_lshl_add_u32 v{A+10}, v{A+9}, 3, v{A+8}   ; 8h + r
    v_lshlrev_b32 v{A+10}, 7, v{A+10}
    v_lshrrev_b32 v{A+8}, 1, v{A+8}
    v_lshl_add_u32 v{A+10}, v{A+8}, 6, v{A+10}  ; + (r>>1)*64
    v_bfe_u32 v{A+8}, v{V_LANE}, 4, 1
    v_lshl_add_u32 v{A+10}, v{A+8}, 5, v{A+10}  ; + g*32
    v_and_b32 v{A+8}, 3, v{V_LANE}
    v_lshl_add_u32 v{V_TR}, v{A+8}, 3, v{A+10}  ; + c*8
    v_xor_b32 v{V_TR+1}, 64, v{V_TR}
    v_add_u32 v{V_TR+2}, 0x10000, v{V_TR}
    v_add_u32 v{V_TR+3}, 0x10000, v{V_TR+1}
    v_add_u32 v{V_TR+4}, 0x20000, v{V_TR}
    v_add_u32 v{V_TR+5}, 0x20000, v{V_TR+1}
    s_mov_b32 s{sONE}, 0x3f803f80
    s_mov_b32 s{sSELLO}, 0x00003f80
    s_mov_b32 s{sSELHI}, 0x3f800000
    v_mov_b32 v{T}, 0
    v_mov_b32 v{T+1}, 0
    v_mov_b32 v{T+2}, 0
    v_mov_b32 v{T+3}, 0
    """)
    for q in range(4):
        p.wait_vm([("x", q)])
        for ks in range(8 * q, 8 * q + 8):
            p(f"ds_read_b128 {xf(ks)}, v{A+4+(ks&3)} offset:{(ks>>2)*4096}", tag=("xr", ks))
        if q > 0:
            for ks in range(8 * (q-1), 8 * q):
                for r in range(4):
                    v = XB + 4 * ks + r
                    p(f"v_dot2_f32_bf16 v{T+(r&1)}, v{v}, s{sONE}, v{T+(r&1)}")
                    p(f"v_dot2_f32_bf16 v{T+2+(r&1)}, v{v}, v{v}, v{T+2+(r&1)}")
        p.wait_all(vm=False)
        for it in dma_items(q + 1): emit(p, it)
    for ks in range(24, 32):
        for r in range(4):
            v = XB + 4 * ks + r
            p(f"v_dot2_f32_bf16 v{T+(r&1)}, v{v}, s{sONE}, v{T+(r&1)}")
            p(f"v_dot2_f32_bf16 v{T+2+(r&1)}, v{v}, v{v}, v{T+2+(r&1)}")
    p(f"""
    v_add_f32 v{T}, v{T}, v{T+1}
    v_add_f32 v{T+2}, v{T+2}, v{T+3}
    v_mov_b32 v{T+1}, v{T}
    v_mov_b32 v{T+3}, v{T+2}
    v_permlane32_swap_b32 v{T}, v{T+1}
    v_permlane32_swap_b32 v{T+2}, v{T+3}
    v_add_f32 v{T}, v{T}, v{T+1}
    v_add_f32 v{T+2}, v{T+2}, v{T+3}
    v_mul_f32 v{V_NM}, {f2u(-1.0/512):#x}, v{T}
    v_mul_f32 v{T+2}, {f2u(1.0/512):#x}, v{T+2}
    v_fma_f32 v{T+2}, -v{V_NM}, v{V_NM}, v{T+2}
    v_max_f32 v{T+2}, 0, v{T+2}
    v_add_f32 v{V_S2}, {f2u(1e-5):#x}, v{T+2}
    v_rsq_f32 v{V_SC}, v{V_S2}
    """)
    def center_dot(ks):
        out = []
        for r in range(4):
            v = XB + 4 * ks + r
            t = T + 4 + 2 * (r & 1)
            out += [f"v_dot2_f32_bf16 v{t}, v{v}, s{sSELLO}, v{V_NM}", f"v_dot2_f32_bf16 v{t+1}, v{v}, s{sSELHI}, v{V_NM}"]
            out += [("cvt", v, t)]
        return out
    seq = []
    for ks in range(16): seq += center_dot(ks)
    pend = None
    for it in seq:
        if isinstance(it, tuple):
            if pend: p(f"v_cvt_pk_bf16_f32 v{pend[1]}, v{pend[2]}, v{pend[2]+1}")
            pend = it
        else: p(it)
    p(f"""
    v_mul_f32 v{V_C1}, {f2u(C1):#x}, v{V_SC}
    v_mul_f32 v{V_C2}, v{V_SC}, v{V_SC}
    v_mul_f32 v{V_C2}, v{V_C2}, v{V_C1}
    """)
    p(f"v_cvt_pk_bf16_f32 v{pend[1]}, v{pend[2]}, v{pend[2]+1}")
    p(f"v_mul_f32 v{V_C2}, {f2u(0.044715):#x}, v{V_C2}")

    def center_plain(ks):
        out = []
        for r in range(4):
            v = XB + 4 * ks + r
            t = T + 4 + 2 * (r & 1)
            out += [f"v_lshlrev_b32 v{t}, 16, v{v}", f"v_and_b32 v{t+1}, 0xffff0000, v{v}",
                    f"v_add_f32 v{t}, v{t}, v{V_NM}", f"v_add_f32 v{t+1}, v{t+1}, v{V_NM}",
                    f"v_cvt_pk_bf16_f32 v{v}, v{t}, v{t+1}"]
        return out

    RP = ACC + 64
    def repack_loads():
        it = [
            f"s_lshl_b32 s{sGW}, s2, 2",
            f"s_add_u32 s{sGW}, s{sGW}, s{sW}",
            f"v_lshrrev_b32 v{T+8}, 5, v{V_LANE}",
            f"v_and_b32 v{T+9}, 31, v{V_LANE}",
            f"v_lshlrev_b32 v{T+8}, 12, v{T+8}",
            f"v_lshl_add_u32 v{T+8}, v{T+9}, 1, v{T+8}",
            f"s_lshr_b32 s{sT}, s{sGW}, 4",
            f"s_lshl_b32 s{sT}, s{sT}, 14",
            f"s_and_b32 s{sT2}, s{sGW}, 15",
            f"s_lshl_b32 s{sT2}, s{sT2}, 6",
            f"s_add_u32 s76, s{sT}, s{sT2}",
            f"s_add_u32 s77, s76, 8192",
            f"s_mov_b32 s84, {(-768*1024) & 0xffffffff:#x}",
            [f"s_cmp_lt_u32 s{sGW}, 768",
            f"s_cselect_b32 s{S_RP}, s{S_WD}, s{S_WO}",
            f"s_cselect_b32 s{S_RP+1}, s{S_WD+1}, s{S_WO+1}",
            f"s_cselect_b32 s{S_RP+2}, s{S_WD+2}, s{S_WO+2}",
            f"s_cselect_b32 s{sT}, {1024*1024}, s84"],
            f"s_mov_b32 s{S_RP+3}, 0x00020000",
            f"s_add_u32 s78, s76, s{sT}",
            f"s_add_u32 s79, s78, 8192",
            f"s_add_u32 s80, s76, {256*1024}",
            f"s_add_u32 s81, s80, 8192",
        ]
        for j, sr in ((0, S_WD), (1, S_RP), (2, S_WO)):
            for i in range(8):
                it.append((f"buffer_load_ushort v{RP+8*j+i}, v{T+8}, s[{sr}:{sr+3}], s{76+2*j+(i>>2)} offen offset:{(i&3)*1024}", "rp"))
        return it
    def repack_stores():
        it = [lambda: p.wait_vm("rp")]
        for j in range(3):
            for i in range(4):
                it.append(f"v_lshl_or_b32 v{RP+24+(i if j != 1 else 4+i)}, v{RP+8*j+2*i+1}, 16, v{RP+8*j+2*i}")
            if j == 0:
                it.append(f"s_lshl_b32 s{sT2}, s{sGW}, 10")
                it.append(f"s_add_u32 s{sT2}, s{sT2}, {WDF:#x}")
            elif j == 1:
                it.append(f"s_add_u32 s{sT2}, s{sT2}, {1024*1024}")
            else:
                it.append(f"s_mov_b32 s84, 0x40000000")
                it.append([f"s_cmp_lt_u32 s{sGW}, 256", f"s_cselect_b32 s{sT}, {1024*1024}, s84"])
                it.append(f"s_add_u32 s{sT2}, s{sT2}, s{sT}")
            b = RP + 24 + (4 if j == 1 else 0)
            it.append((f"buffer_store_dwordx4 v[{b}:{b+3}], v{V_L16}, s[{S_WS}:{S_WS+3}], s{sT2} offen {STF}", "st"))
        return it

    PK = T + 8
    PK = 28
    def geglu(gc):
        g0 = ACC + 16 * accp[gc]; u0 = ACC + 16 * accp[gc + 1]
        it = [f"s_mul_i32 s{sQKO}, s{sTT}, {112*1024}",
              f"s_lshl_b32 s{sT2}, s{sCG}, 13",
              f"s_add_u32 s{sQKO}, s{sQKO}, s{sT2}",
              f"s_add_u32 s{sQKO}, s{sQKO}, {HF + (gc//2)*4096:#x}"]
        for fr in range(4):
            for pr in range(4):
                a = 8 * fr + 2 * pr
                ga, gb, ua, ub = g0 + a, g0 + a + 1, u0 + a, u0 + a + 1
                ta, tb = T + 4, T + 5
                it += [f"v_mul_f32 v{ta}, v{ga}, v{ga}", f"v_mul_f32 v{tb}, v{gb}, v{gb}",
                       f"v_fma_f32 v{ta}, v{ta}, v{V_C2}, v{V_C1}", f"v_fma_f32 v{tb}, v{tb}, v{V_C2}, v{V_C1}",
                       f"v_mul_f32 v{ta}, v{ta}, v{ga}", f"v_mul_f32 v{tb}, v{tb}, v{gb}",
                       f"v_exp_f32 v{ta}, v{ta}", f"v_exp_f32 v{tb}, v{tb}",
                       f"v_mul_f32 v{ua}, v{ga}, v{ua}", f"v_mul_f32 v{ub}, v{gb}, v{ub}",
                       f"v_fma_f32 v{ta}, v{ta}, v{V_S2}, v{V_S2}", f"v_fma_f32 v{tb}, v{tb}, v{V_S2}, v{V_S2}",
                       f"v_rcp_f32 v{ta}, v{ta}", f"v_rcp_f32 v{tb}, v{tb}",
                       f"v_mul_f32 v{ua}, v{ua}, v{ta}", f"v_mul_f32 v{ub}, v{ub}, v{tb}",
                       f"v_cvt_pk_bf16_f32 v{g0+8*fr+pr}, v{ua}, v{ub}"]
            b = g0 + 8 * fr
            it.append((f"buffer_store_dwordx4 v[{b}:{b+3}], v{V_L16}, s[{S_WS}:{S_WS+3}], s{sQKO} offen offset:{fr*1024} {STF}", "st"))
        return it
    def qk_epi(c):
        a0 = ACC + 16 * accp[c]
        it = [f"s_and_b32 s{sT2}, s{sCG}, 7",
              f"s_lshl_b32 s{sT2}, s{sT2}, 8",
              f"s_add_u32 s{sT2}, s{sT2}, s{sTT}",
              [f"s_cmp_lt_u32 s{sCG}, 8",
              f"s_cselect_b32 s{sT}, 10, 11",
              f"s_cselect_b32 s84, {QF:#x}, {KVF:#x}",
              f"s_cselect_b32 s85, {f2u(QSCALE):#x}, 1.0"],
              f"s_lshl_b32 s{sT2}, s{sT2}, s{sT}",
              f"s_add_u32 s{sQKO}, s{sT2}, s84",
              f"s_lshl_b32 s82, 64, s{sT}",
              f"v_mul_f32 v{T+4}, s85, v{V_SC}"]
        for fr in range(4):
            for pr in range(4):
                a = a0 + 8 * fr + 2 * pr
                it += [f"v_mul_f32 v{a}, v{a}, v{T+4}", f"v_mul_f32 v{a+1}, v{a+1}, v{T+4}",
                       f"v_cvt_pk_bf16_f32 v{a0+8*fr+pr}, v{a}, v{a+1}"]
            b = a0 + 8 * fr
            it.append((f"buffer_store_dwordx4 v[{b}:{b+3}], v{V_L16}, s[{S_WS}:{S_WS+3}], s{sQKO} offen {STF}", "st"))
            if fr < 3: it.append(f"s_add_u32 s{sQKO}, s{sQKO}, s82")
        return it
    def v_epi(c):
        a0 = ACC + 16 * accp[c]
        it = [f"s_sub_u32 s{sT2}, s{sCG}, 14",
              f"s_lshl_b32 s{sT2}, s{sT2}, 10",
              f"s_add_u32 s{sT2}, s{sT2}, s{sTT}",
              f"s_lshl_b32 s{sT2}, s{sT2}, 11",
              f"s_add_u32 s{sQKO}, s{sT2}, {KVF + 1024 + c*4*64*2048:#x}"]
        for fr in range(4):
            for pr in range(4):
                a = a0 + 8 * fr + 2 * pr
                i = (8 * fr + 2 * pr) & 15
                it += [f"v_accvgpr_read_b32 v{T+4}, a{32+i}", f"v_accvgpr_read_b32 v{T+5}, a{33+i}",
                       f"v_mul_f32 v{a}, v{a}, v{T+4}", f"v_mul_f32 v{a+1}, v{a+1}, v{T+5}",
                       f"v_cvt_pk_bf16_f32 v{a0+8*fr+pr}, v{a}, v{a+1}"]
            b = a0 + 8 * fr
            it.append((f"buffer_store_dwordx4 v[{b}:{b+3}], v{V_VST}, s[{S_WS}:{S_WS+3}], s{sQKO} offen offset:{(fr&1)*512} {STF}", "st"))
            if fr == 1: it.append(f"s_add_u32 s{sQKO}, s{sQKO}, {2*64*2048}")
        return it

    if not mixed:
        p(f"""
        v_lshrrev_b32 v{T+8}, 5, v{V_LANE}
        v_lshlrev_b32 v{T+8}, 4, v{T+8}
        v_bfe_u32 v{T+9}, v{V_LANE}, 4, 1
        v_lshlrev_b32 v{V_VST}, 17, v{T+9}
        v_lshl_add_u32 v{V_VST}, v{T+8}, 4, v{V_VST}
        v_and_b32 v{T+9}, 15, v{V_LANE}
        v_lshl_add_u32 v{V_VST}, v{T+9}, 4, v{V_VST}
        """)
        p(f"v_accvgpr_write_b32 a48, v{V_SC}")
        p("s_nop 1")
        for r in range(16):
            p(f"ds_bpermute_b32 a{32+r}, v{T+8}, a48 offset:{((r&3)+8*(r>>2))*4}", tag="bp")
        p.wait_all(vm=False)

    side = {s: [] for s in range(10)}
    c2 = []
    for ks in range(16, 32): c2 += center_plain(ks)
    half = len(c2) // 2
    side[0] = c2[:half]; side[1] = c2[half:]
    side[2] = repack_loads()
    side[3] = repack_stores()
    if mixed:
        g = geglu(0); side[4] = g[:len(g)//2]; side[5] = g[len(g)//2:]
        g = geglu(2); side[8] = g[:len(g)//2]; side[9] = g[len(g)//2:]
        tail = qk_epi(4)
        pre = {4: wd_offsets(3072)}
    else:
        side[4] = v_epi(0); side[5] = v_epi(1); side[6] = v_epi(2); side[8] = v_epi(3)
        tail = qk_epi(4)
        pre = {}

    def tr_reads(gk):
        s, ks = divmod(gk, 16)
        pos = s % 5
        b = gk % (PF + 1)
        for t in range(2):
            for i in range(2):
                if pos == 0: ab = 0x20000 + (ks >> 2) * 8192
                else: ab = (ks >> 2) * 32768 + (pos - 1) * 8192
                ab += (16 * (ks & 3) + 4 * i) * 128
                a = 8 * b + 4 * t + 2 * i
                p(f"ds_read_b64_tr_b16 a[{a}:{a+1}], v{V_TR + 2*(ab>>16) + t} offset:{ab & 0xffff}", tag=("tr", gk))

    p.wait_vm([("w", 0)])
    p("s_barrier")
    for gk in range(PF): tr_reads(gk)
    for s in range(10):
        c, hf = steps[s]
        kind = chunks[c][0]
        sl = [[], [], []] + spread(side[s], 29) if s >= 4 else spread(side[s], 32)
        dm = spread(pre.get(s, []) + dma_items(s + 4), 14) if 1 <= s <= 5 else [[]] * 14
        for ks in range(16):
            gk = 16 * s + ks
            if ks == 8 and s < 9:
                p.wait_vm([("w", s + 1)])
                p("s_barrier")
            if gk + PF < 160: tr_reads(gk + PF)
            p.wait_lg([("tr", gk)])
            b = gk % (PF + 1)
            for t in range(2):
                wf = f"a[{8*b+4*t}:{8*b+4*t+3}]"
                x = xf(16 * hf + ks)
                d = acc(accp[c] + t)
                cc = "0" if (hf == 0 and ks == 0) else d
                if kind == "V": p(f"v_mfma_f32_32x32x16_bf16 {d}, {x}, {wf}, {cc}")
                else: p(f"v_mfma_f32_32x32x16_bf16 {d}, {wf}, {x}, {cc}")
                for it in sl[2 * ks + t]: emit(p, it)
                if ks >= 8 and 2 * (ks - 8) + t < 14:
                    for it in dm[2 * (ks - 8) + t]: emit(p, it)
    for it in tail: emit(p, it)
    p.label(f"{pfx}_end")
    p("s_endpgm")

def k1():
    p = Prog()
    p(f"""
    s_cmp_ge_u32 s2, 256
    s_cbranch_scc1 K1_exit
    s_load_dwordx4 s[36:39], s[0:1], 0
    s_load_dwordx2 s[40:41], s[0:1], 16
    s_load_dwordx4 s[44:47], s[0:1], 32
    s_load_dwordx2 s[48:49], s[0:1], 48
    s_load_dwordx2 s[50:51], s[0:1], 72
    v_lshrrev_b32 v2, 6, v0
    v_and_b32 v1, 63, v0
    v_readfirstlane_b32 s32, v2
    s_and_b32 s33, s2, 1
    s_lshl_b32 s33, s33, 3
    s_bfe_u32 s35, s2, 0x30003
    s_add_u32 s33, s33, s35
    s_bfe_u32 s34, s2, 0x20001
    s_lshl_b32 s34, s34, 2
    s_lshr_b32 s35, s2, 6
    s_add_u32 s34, s34, s35
    s_cmp_ge_u32 s34, 14
    s_cbranch_scc1 K1_pure
    """)
    k1_path(p, True, "K1m")
    p.vm = []; p.lg = []
    p(".p2align 6")
    p.label("K1_pure")
    k1_path(p, False, "K1p")
    p.label("K1_exit")
    p("s_endpgm")
    return p

RSTRIDE = 272
RWAVE = 64 * RSTRIDE
def reduce_write(p, accb, vaddr):
    for ti in range(2):
        for ci in range(2):
            for q in range(4):
                a = accb + 16 * (2 * ti + ci) + 4 * q
                p(f"ds_write_b128 v{vaddr}, v[{a}:{a+3}] offset:{ti*32*RSTRIDE + (ci*32+8*q)*4}", tag="rw")
def reduce_read_sum(p, rb, vaddr, addb):
    for g in range(4):
        for i in range(4):
            a = rb + 16 * g + 4 * i
            p(f"ds_read_b128 v[{a}:{a+3}], v{vaddr} offset:{g*RWAVE + i*16}", tag=("rr", g))
    p.wait_lg([("rr", 1)])
    for i in range(16): p(f"v_add_f32 v{rb+i}, v{rb+i}, v{rb+16+i}")
    p.wait_lg([("rr", 3)])
    for i in range(16): p(f"v_add_f32 v{rb+32+i}, v{rb+32+i}, v{rb+48+i}")
    p.wait_vm("add")
    for i in range(8):
        p(f"v_lshlrev_b32 v{rb+16+2*i}, 16, v{addb+i}")
        p(f"v_and_b32 v{rb+17+2*i}, 0xffff0000, v{addb+i}")
    for i in range(16): p(f"v_add_f32 v{rb+i}, v{rb+i}, v{rb+32+i}")
    for i in range(16): p(f"v_add_f32 v{rb+i}, v{rb+i}, v{rb+16+i}")
    for i in range(8): p(f"v_cvt_pk_bf16_f32 v{rb+16+i}, v{rb+2*i}, v{rb+2*i+1}")

def tile_ids(p, sRBK, sCBK, sT):
    p(f"""
    s_bfe_u32 s{sRBK}, s2, 0x20001
    s_lshl_b32 s{sRBK}, s{sRBK}, 3
    s_bfe_u32 s{sT}, s2, 0x30003
    s_add_u32 s{sRBK}, s{sRBK}, s{sT}
    s_and_b32 s{sCBK}, s2, 1
    s_lshl_b32 s{sCBK}, s{sCBK}, 2
    s_lshr_b32 s{sT}, s2, 6
    s_add_u32 s{sCBK}, s{sCBK}, s{sT}
    """)

K2_XCH = 4 * RWAVE
K2_LDS = K2_XCH + 8 * 2560
def k2():
    p = Prog()
    SWS, SX = 4, 8
    sW, sT, sT2, sKV, sKV0, sQ, sCNT, sFLAG, sHEAD, sQT = 16, 17, 18, 19, 20, 21, 22, 23, 24, 25
    p(f"""
    s_cmp_ge_u32 s2, 256
    s_cbranch_scc1 K2_exit
    s_load_dwordx2 s[12:13], s[0:1], 72
    s_load_dwordx2 s[14:15], s[0:1], 0
    v_lshrrev_b32 v2, 6, v0
    v_and_b32 v1, 63, v0
    v_readfirstlane_b32 s{sW}, v2
    v_lshlrev_b32 v2, 4, v1
    s_cmp_ge_u32 s{sW}, 8
    s_cbranch_scc1 K2_gemm
    """)
    Q, KB, VB, P, SA, SB, OA, OB, NA, NB, T = 4, 12, 24, 48, 56, 72, 88, 104, 120, 136, 152
    def r4(b): return f"v[{b}:{b+3}]"
    def r16(b): return f"v[{b}:{b+15}]"
    p(f"""
    s_and_b32 s{sHEAD}, s2, 7
    s_lshl_b32 s{sHEAD}, s{sHEAD}, 2
    s_lshr_b32 s{sT}, s2, 6
    s_add_u32 s{sHEAD}, s{sHEAD}, s{sT}
    s_bfe_u32 s{sQT}, s2, 0x30003
    s_lshl_b32 s{sQT}, s{sQT}, 3
    s_and_b32 s{sT}, s{sW}, 3
    s_lshl_b32 s{sT}, s{sT}, 1
    s_add_u32 s{sQT}, s{sQT}, s{sT}
    s_lshl_b32 s{sT}, s{sHEAD}, 6
    s_add_u32 s{sQ}, s{sT}, s{sQT}
    s_lshl_b32 s{sQ}, s{sQ}, 10
    s_lshr_b32 s{sT2}, s{sW}, 2
    s_lshl_b32 s{sT2}, s{sT2}, 5
    s_add_u32 s{sT}, s{sT}, s{sT2}
    s_lshl_b32 s{sT}, s{sT}, 11
    s_add_u32 s{sKV0}, s{sT}, {KVF:#x}
    s_mov_b32 s26, 0x0000ffff
    s_mov_b32 s27, 0x0000ffff
    s_mov_b32 s{sFLAG}, 0
    v_lshrrev_b32 v{T}, 5, v1
    v_and_b32 v{T+1}, 15, v1
    v_lshlrev_b32 v{T+1}, 4, v{T+1}
    v_lshl_add_u32 v3, v{T}, 8, v{T+1}
    v_add_u32 v3, 1024, v3
    v_and_b32 v{T}, 27, v1
    v_mov_b32 v{T+1}, 0x3f803f80
    v_cmp_eq_u32 vcc, 16, v{T}
    v_cndmask_b32 v{T+7}, 0, v{T+1}, vcc
    s_waitcnt lgkmcnt(0)
    """)
    srd(p, SWS, 12, WS_SIZE)
    W = f"s[{SWS}:{SWS+3}]"
    p(f"buffer_load_dwordx4 {r4(Q)}, v2, {W}, s{sQ} offen")
    p(f"buffer_load_dwordx4 {r4(Q+4)}, v2, {W}, s{sQ} offen offset:1024")
    p.label("K2_restart")
    for i in range(24): p(f"v_mov_b32 v{VB+i}, v{T+7}")
    p(f"""
    buffer_load_dwordx4 {r4(KB)}, v2, {W}, s{sKV0} offen
    buffer_load_dwordx4 {r4(KB+4)}, v2, {W}, s{sKV0} offen offset:2048
    s_mov_b64 exec, s[26:27]
    buffer_load_dwordx4 {r4(VB)}, v3, {W}, s{sKV0} offen
    buffer_load_dwordx4 {r4(VB+4)}, v3, {W}, s{sKV0} offen offset:512
    s_mov_b64 exec, -1
    s_add_u32 s{sKV}, s{sKV0}, 2048
    buffer_load_dwordx4 {r4(KB+8)}, v2, {W}, s{sKV} offen offset:2048
    s_mov_b64 exec, s[26:27]
    buffer_load_dwordx4 {r4(VB+8)}, v3, {W}, s{sKV} offen
    buffer_load_dwordx4 {r4(VB+12)}, v3, {W}, s{sKV} offen offset:512
    s_mov_b64 exec, -1
    """)
    for i in range(16):
        p(f"v_mov_b32 v{OA+i}, 0")
        p(f"v_mov_b32 v{OB+i}, 0")
    for i in range(8): p(f"v_mov_b32 v{P+i}, 0")
    p(f"""
    s_waitcnt vmcnt(6)
    s_cmp_lg_u32 s{sFLAG}, 0
    s_cbranch_scc1 K2_havemax
    v_mfma_f32_32x32x16_bf16 {r16(SA)}, {r4(KB)}, {r4(Q)}, 0
    v_mfma_f32_32x32x16_bf16 {r16(SB)}, {r4(KB)}, {r4(Q+4)}, 0
    """)
    def maxchain(dst, S, first):
        if first:
            p(f"v_max3_f32 v{dst}, v{S}, v{S+1}, v{S+2}")
            for i in range(3, 15, 2): p(f"v_max3_f32 v{dst}, v{dst}, v{S+i}, v{S+i+1}")
            p(f"v_max_f32 v{dst}, v{dst}, v{S+15}")
        else:
            for i in range(0, 16, 2): p(f"v_max3_f32 v{dst}, v{dst}, v{S+i}, v{S+i+1}")
    maxchain(T, SA, True)
    maxchain(T + 2, SB, True)
    p.label("K2_havemax")
    p(f"""
    v_mov_b32 v{T+1}, v{T}
    v_mov_b32 v{T+3}, v{T+2}
    v_permlane32_swap_b32 v{T}, v{T+1}
    v_permlane32_swap_b32 v{T+2}, v{T+3}
    v_max_f32 v{T}, v{T}, v{T+1}
    v_max_f32 v{T+2}, v{T+2}, v{T+3}
    """)
    for i in range(16): p(f"v_xor_b32 v{NA+i}, 0x80000000, v{T}")
    for i in range(16): p(f"v_xor_b32 v{NB+i}, 0x80000000, v{T+2}")
    p(f"v_mfma_f32_32x32x16_bf16 {r16(SA)}, {r4(KB)}, {r4(Q)}, {r16(NA)}")
    p(f"s_mov_b32 s{sCNT}, 10")
    p("s_nop 10")

    def phase(S, m1, m2, m3, after_m2=(), before_m3=()):
        e = lambda i: p(f"v_exp_f32 v{S+i}, v{S+i}")
        c = lambda i: p(f"v_cvt_pk_bf16_f32 v{P+i}, v{S+2*i}, v{S+2*i+1}")
        if m1: p(m1)
        e(0); e(1); e(2); c(0); e(3); e(4); c(1); e(5)
        p(m2)
        for x in after_m2: p(x)
        e(6); c(2); e(7); e(8); c(3); e(9); e(10)
        for x in before_m3: p(x)
        p(m3)
        c(4); e(11); e(12); c(5); e(13); e(14); c(6); e(15)
        p("s_nop 0")
        c(7)
    def iteration(b, loads=True, last=False, wait=3):
        bp = (b + 2) % 3; bn = (b + 1) % 3
        ld = []
        if loads:
            ld = [f"s_add_u32 s{sKV}, s{sKV}, 2048",
                  f"buffer_load_dwordx4 {r4(KB+4*b)}, v2, {W}, s{sKV} offen offset:2048",
                  f"s_mov_b64 exec, s[26:27]",
                  f"buffer_load_dwordx4 {r4(VB+8*bp)}, v3, {W}, s{sKV} offen",
                  f"buffer_load_dwordx4 {r4(VB+8*bp+4)}, v3, {W}, s{sKV} offen offset:512",
                  f"s_mov_b64 exec, -1"]
        phase(SA,
              f"v_mfma_f32_32x32x16_bf16 {r16(SB)}, {r4(KB+4*b)}, {r4(Q+4)}, {r16(NB)}",
              f"v_mfma_f32_32x32x16_bf16 {r16(OB)}, {r4(VB+8*bp+4)}, {r4(P+4)}, {r16(OB)}",
              f"v_mfma_f32_32x32x16_bf16 {r16(OA)}, {r4(VB+8*b)}, {r4(P)}, {r16(OA)}",
              after_m2=ld, before_m3=[f"s_waitcnt vmcnt({wait})"])
        phase(SB,
              None if last else f"v_mfma_f32_32x32x16_bf16 {r16(SA)}, {r4(KB+4*bn)}, {r4(Q)}, {r16(NA)}",
              f"v_mfma_f32_32x32x16_bf16 {r16(OA)}, {r4(VB+8*b+4)}, {r4(P+4)}, {r16(OA)}",
              f"v_mfma_f32_32x32x16_bf16 {r16(OB)}, {r4(VB+8*b)}, {r4(P)}, {r16(OB)}")
    p(".p2align 6")
    p.label("K2_loop")
    for b in range(3): iteration(b, wait=6)
    p(f"""
    s_sub_u32 s{sCNT}, s{sCNT}, 1
    s_cmp_lg_u32 s{sCNT}, 5
    s_cbranch_scc1 K2_nobar
    s_cmp_lg_u32 s{sFLAG}, 0
    s_cbranch_scc1 K2_loop
    s_barrier
    K2_nobar:
    s_cmp_lg_u32 s{sCNT}, 0
    s_cbranch_scc1 K2_loop
    """)
    iteration(0, loads=False, wait=3)
    iteration(1, loads=False, last=True, wait=0)
    p(f"v_mfma_f32_32x32x16_bf16 {r16(OB)}, {r4(VB+8+4)}, {r4(P+4)}, {r16(OB)}")
    p(f"v_mov_b32 v{T}, v{OA+8}")
    for i in range(8): p(f"v_fma_f32 v{T}, v{OA+i}, 0, v{T}")
    p(f"v_mov_b32 v{T+2}, v{OB+8}")
    for i in range(8): p(f"v_fma_f32 v{T+2}, v{OB+i}, 0, v{T+2}")
    p(f"""
    v_mov_b32 v{T+1}, {f2u(2.0**60):#x}
    v_cmp_nlt_f32 vcc, v{T}, v{T+1}
    v_cmp_nlt_f32 s[28:29], v{T+2}, v{T+1}
    s_or_b64 vcc, vcc, s[28:29]
    s_cmp_lg_u32 s{sFLAG}, 0
    s_cbranch_scc1 K2_fine
    s_cbranch_vccnz K2_fallback
    K2_fine:
    s_mul_i32 s{sT}, s{sW}, 2560
    s_xor_b32 s{sT2}, s{sW}, 4
    s_mul_i32 s{sT2}, s{sT2}, 2560
    s_add_u32 s{sT}, s{sT}, {K2_XCH}
    s_add_u32 s{sT2}, s{sT2}, {K2_XCH}
    v_add_u32 v{T}, s{sT}, v2
    v_add_u32 v{T+1}, s{sT2}, v2
    v_lshlrev_b32 v{T+4}, 3, v1
    v_add_u32 v{T+2}, s{sT}, v{T+4}
    v_add_u32 v{T+3}, s{sT2}, v{T+4}
    s_lshl_b32 s{sQT}, s{sQT}, 5
    s_add_u32 s{sQT}, s{sQT}, s{sHEAD}
    s_lshl_b32 s{sQT}, s{sQT}, 10
    s_add_u32 s{sQT}, s{sQT}, {OF:#x}
    s_cmp_ge_u32 s{sW}, 4
    s_cbranch_scc1 K2_finB
    """)
    def finish(Oown, Nown, Ooth, Noth, off):
        X = SA
        p(f"""
        v_mov_b32 v{Ooth+9}, v{Noth}
        ds_write_b128 v{T}, {r4(Ooth)}
        ds_write_b128 v{T}, {r4(Ooth+4)} offset:1024
        ds_write_b64 v{T+2}, v[{Ooth+8}:{Ooth+9}] offset:2048
        s_waitcnt lgkmcnt(0)
        s_barrier
        ds_read_b64 v[{X+8}:{X+9}], v{T+3} offset:2048
        ds_read_b128 {r4(X)}, v{T+1}
        ds_read_b128 {r4(X+4)}, v{T+1} offset:1024
        s_waitcnt lgkmcnt(2)
        v_min_f32 v{X+10}, v{Nown}, v{X+9}
        v_sub_f32 v{X+11}, v{X+10}, v{Nown}
        v_sub_f32 v{X+12}, v{X+10}, v{X+9}
        v_exp_f32 v{X+11}, v{X+11}
        v_exp_f32 v{X+12}, v{X+12}
        v_mul_f32 v{X+13}, v{Oown+8}, v{X+11}
        v_fma_f32 v{X+13}, v{X+8}, v{X+12}, v{X+13}
        v_rcp_f32 v{X+13}, v{X+13}
        v_mul_f32 v{X+11}, v{X+11}, v{X+13}
        v_mul_f32 v{X+12}, v{X+12}, v{X+13}
        s_waitcnt lgkmcnt(0)
        """)
        for i in range(8): p(f"v_mul_f32 v{Oown+i}, v{Oown+i}, v{X+11}")
        for i in range(8): p(f"v_fma_f32 v{Oown+i}, v{X+i}, v{X+12}, v{Oown+i}")
        for i in range(4): p(f"v_cvt_pk_bf16_f32 v{P+i}, v{Oown+2*i}, v{Oown+2*i+1}")
        if off: p(f"s_add_u32 s{sQT}, s{sQT}, {off}")
        p(f"buffer_store_dwordx4 {r4(P)}, v2, {W}, s{sQT} offen")
        p("s_endpgm")
    finish(OA, NA, OB, NB, 0)
    p.label("K2_finB")
    finish(OB, NB, OA, NA, 32768)
    p.label("K2_fallback")
    p(f"""
    s_mov_b32 s{sFLAG}, 1
    s_mov_b32 s{sKV}, s{sKV0}
    s_mov_b32 s{sCNT}, 32
    v_mov_b32 v{T}, 0xff800000
    v_mov_b32 v{T+2}, 0xff800000
    K2_fbloop:
    buffer_load_dwordx4 {r4(KB)}, v2, {W}, s{sKV} offen
    s_add_u32 s{sKV}, s{sKV}, 2048
    s_waitcnt vmcnt(0)
    v_mfma_f32_32x32x16_bf16 {r16(SA)}, {r4(KB)}, {r4(Q)}, 0
    v_mfma_f32_32x32x16_bf16 {r16(SB)}, {r4(KB)}, {r4(Q+4)}, 0
    """)
    maxchain(T, SA, False)
    maxchain(T + 2, SB, False)
    p(f"""
    s_sub_u32 s{sCNT}, s{sCNT}, 1
    s_cmp_lg_u32 s{sCNT}, 0
    s_cbranch_scc1 K2_fbloop
    s_branch K2_restart
    """)
    p.vm = []; p.lg = []
    p(".p2align 6")
    p.label("K2_gemm")
    sRBK, sCBK, sH, sWD, sXO = 30, 31, 32, 33, 34
    AC, FB, AD = 16, 80, 8
    tile_ids(p, sRBK, sCBK, sT)
    p(f"""
    s_sub_u32 s{sW}, s{sW}, 8
    s_mul_i32 s{sH}, s{sRBK}, {2*112*1024}
    s_mul_i32 s{sT}, s{sW}, {28*1024}
    s_add_u32 s{sH}, s{sH}, s{sT}
    s_add_u32 s{sH}, s{sH}, {HF:#x}
    s_mul_i32 s{sWD}, s{sW}, {28*16384}
    s_lshl_b32 s{sT}, s{sCBK}, 11
    s_add_u32 s{sWD}, s{sWD}, s{sT}
    s_add_u32 s{sWD}, s{sWD}, {WDF:#x}
    v_add_u32 v3, {112*1024}, v2
    s_waitcnt lgkmcnt(0)
    """)
    srd(p, SWS, 12, WS_SIZE)
    srd(p, SX, 14, 2048 * 1024)
    NST = 5
    def gl(fs):
        b = FB + 16 * (fs % NST)
        if fs and fs % 4 == 0: p(f"s_add_u32 s{sH}, s{sH}, 4096")
        p(f"buffer_load_dwordx4 {r4(b)}, v2, {W}, s{sWD} offen", tag=("g", fs))
        p(f"buffer_load_dwordx4 {r4(b+4)}, v2, {W}, s{sWD} offen offset:1024", tag=("g", fs))
        p(f"buffer_load_dwordx4 {r4(b+8)}, v2, {W}, s{sH} offen offset:{(fs%4)*1024}", tag=("g", fs))
        p(f"buffer_load_dwordx4 {r4(b+12)}, v3, {W}, s{sH} offen offset:{(fs%4)*1024}", tag=("g", fs))
        p(f"s_add_u32 s{sWD}, s{sWD}, 16384")
    for fs in range(NST - 1): gl(fs)
    p(f"""
    v_and_b32 v4, 31, v1
    v_mul_u32_u24 v4, {RSTRIDE}, v4
    v_lshrrev_b32 v5, 5, v1
    v_lshl_add_u32 v4, v5, 4, v4
    s_mul_i32 s{sT}, s{sW}, {RWAVE}
    v_add_u32 v4, s{sT}, v4
    v_lshrrev_b32 v5, 2, v1
    s_lshl_b32 s{sT}, s{sW}, 4
    v_add_u32 v5, s{sT}, v5
    v_and_b32 v6, 3, v1
    v_mul_u32_u24 v7, {RSTRIDE}, v5
    v_lshl_add_u32 v7, v6, 6, v7
    v_lshlrev_b32 v5, 10, v5
    v_lshl_add_u32 v5, v6, 5, v5
    s_lshl_b32 s{sXO}, s{sRBK}, 16
    s_lshl_b32 s{sT}, s{sCBK}, 7
    s_add_u32 s{sXO}, s{sXO}, s{sT}
    """)
    for fs in range(28):
        if fs + NST - 1 < 28: gl(fs + NST - 1)
        if fs == 24:
            p(f"buffer_load_dwordx4 {r4(AD)}, v5, s[{SX}:{SX+3}], s{sXO} offen", tag="add")
            p(f"buffer_load_dwordx4 {r4(AD+4)}, v5, s[{SX}:{SX+3}], s{sXO} offen offset:16", tag="add")
        p.wait_vm([("g", fs)])
        b = FB + 16 * (fs % NST)
        for ti in range(2):
            for ci in range(2):
                d = r16(AC + 16 * (2 * ti + ci))
                p(f"v_mfma_f32_32x32x16_bf16 {d}, {r4(b+4*ci)}, {r4(b+8+4*ti)}, {'0' if fs == 0 else d}")
    reduce_write(p, AC, 4)
    p.wait_all(vm=False)
    p("s_barrier")
    reduce_read_sum(p, AC, 7, AD)
    p(f"s_add_u32 s{sXO}, s{sXO}, {Y1:#x}")
    p(f"buffer_store_dwordx4 {r4(AC+16)}, v5, {W}, s{sXO} offen {STF}")
    p(f"buffer_store_dwordx4 {r4(AC+20)}, v5, {W}, s{sXO} offen offset:16 {STF}")
    p.label("K2_exit")
    p("s_endpgm")
    return p

def k3():
    p = Prog()
    SWS, SO = 4, 8
    sW, sT, sRBK, sCBK, sO, sWO, sXO, sY = 16, 17, 18, 19, 20, 21, 22, 23
    def r4(b): return f"v[{b}:{b+3}]"
    def r16(b): return f"v[{b}:{b+15}]"
    AC, FB, AD = 16, 80, 8
    W = f"s[{SWS}:{SWS+3}]"
    p(f"""
    s_cmp_ge_u32 s2, 256
    s_cbranch_scc1 K3_exit
    s_load_dwordx2 s[12:13], s[0:1], 72
    s_load_dwordx2 s[14:15], s[0:1], 56
    v_lshrrev_b32 v2, 6, v0
    v_and_b32 v1, 63, v0
    v_readfirstlane_b32 s{sW}, v2
    v_lshlrev_b32 v2, 4, v1
    v_add_u32 v3, 32768, v2
    """)
    tile_ids(p, sRBK, sCBK, sT)
    p(f"""
    s_lshl_b32 s{sO}, s{sRBK}, 16
    s_lshl_b32 s{sT}, s{sW}, 13
    s_add_u32 s{sO}, s{sO}, s{sT}
    s_add_u32 s{sO}, s{sO}, {OF:#x}
    s_lshl_b32 s{sWO}, s{sW}, 17
    s_lshl_b32 s{sT}, s{sCBK}, 11
    s_add_u32 s{sWO}, s{sWO}, s{sT}
    s_add_u32 s{sWO}, s{sWO}, {WOF:#x}
    s_waitcnt lgkmcnt(0)
    """)
    srd(p, SWS, 12, WS_SIZE)
    for ks in range(8):
        b = FB + 16 * ks
        if ks == 4: p(f"s_add_u32 s{sO}, s{sO}, 4096")
        p(f"buffer_load_dwordx4 {r4(b+8)}, v2, {W}, s{sO} offen offset:{(ks%4)*1024}", tag=("g", ks))
        p(f"buffer_load_dwordx4 {r4(b+12)}, v3, {W}, s{sO} offen offset:{(ks%4)*1024}", tag=("g", ks))
        p(f"buffer_load_dwordx4 {r4(b)}, v2, {W}, s{sWO} offen", tag=("g", ks))
        p(f"buffer_load_dwordx4 {r4(b+4)}, v2, {W}, s{sWO} offen offset:1024", tag=("g", ks))
        if ks < 7: p(f"s_add_u32 s{sWO}, s{sWO}, 16384")
    srd(p, SO, 14, 2048 * 1024)
    p(f"""
    v_and_b32 v4, 31, v1
    v_mul_u32_u24 v4, {RSTRIDE}, v4
    v_lshrrev_b32 v5, 5, v1
    v_lshl_add_u32 v4, v5, 4, v4
    s_mul_i32 s{sT}, s{sW}, {RWAVE}
    v_add_u32 v4, s{sT}, v4
    v_lshrrev_b32 v5, 2, v0
    v_and_b32 v6, 3, v1
    v_mul_u32_u24 v7, {RSTRIDE}, v5
    v_lshl_add_u32 v7, v6, 6, v7
    v_lshlrev_b32 v5, 10, v5
    v_lshl_add_u32 v5, v6, 5, v5
    s_lshl_b32 s{sXO}, s{sRBK}, 16
    s_lshl_b32 s{sT}, s{sCBK}, 7
    s_add_u32 s{sXO}, s{sXO}, s{sT}
    s_add_u32 s{sY}, s{sXO}, {Y1:#x}
    """)
    p(f"buffer_load_dwordx4 {r4(AD)}, v5, {W}, s{sY} offen", tag="add")
    p(f"buffer_load_dwordx4 {r4(AD+4)}, v5, {W}, s{sY} offen offset:16", tag="add")
    for ks in range(8):
        p.wait_vm([("g", ks)])
        b = FB + 16 * ks
        for ti in range(2):
            for ci in range(2):
                d = r16(AC + 16 * (2 * ti + ci))
                p(f"v_mfma_f32_32x32x16_bf16 {d}, {r4(b+4*ci)}, {r4(b+8+4*ti)}, {'0' if ks == 0 else d}")
    reduce_write(p, AC, 4)
    p.wait_all(vm=False)
    p("s_barrier")
    reduce_read_sum(p, AC, 7, AD)
    p(f"buffer_store_dwordx4 {r4(AC+16)}, v5, s[{SO}:{SO+3}], s{sXO} offen")
    p(f"buffer_store_dwordx4 {r4(AC+20)}, v5, s[{SO}:{SO+3}], s{sXO} offen offset:16")
    p.label("K3_exit")
    p("s_endpgm")
    return p

def kd(name, nv, acc, ns=96):
    return f""".amdhsa_kernel {name}
  .amdhsa_next_free_vgpr {nv}
  .amdhsa_next_free_sgpr {ns}
  .amdhsa_accum_offset {acc}
  .amdhsa_group_segment_fixed_size 0
  .amdhsa_kernarg_size 80
  .amdhsa_user_sgpr_count 2
  .amdhsa_user_sgpr_kernarg_segment_ptr 1
  .amdhsa_system_sgpr_workgroup_id_x 1
.end_amdhsa_kernel
"""

def main(out):
    ref = open(f"cdna_kernels/{NAME}.s.ref").read().split("\n")
    head = [l for l in ref if l.startswith(";") and "@launch" not in l and "Override launch" not in l and "grid=ceil" not in l]
    s = "\n".join(head) + "\n"
    s += "; @launch kernel=k1_kernel grid=(256,1,1) block=(256,1,1) lds=163840\n"
    s += f"; @launch kernel=k2_kernel grid=(256,1,1) block=(768,1,1) lds={K2_LDS}\n"
    s += f"; @launch kernel=k3_kernel grid=(256,1,1) block=(256,1,1) lds={4*RWAVE}\n"
    s += '.amdgcn_target "amdgcn-amd-amdhsa--gfx950"\n.text\n'
    v = "-v" in sys.argv
    for nm, fn in (("k1_kernel", k1), ("k2_kernel", k2), ("k3_kernel", k3)):
        s += f".globl {nm}\n.p2align 8\n.type {nm},@function\n{nm}:\n"
        s += fn().text(v)
    s += '.section .rodata,"a"\n.p2align 6\n'
    s += kd("k1_kernel", 256 + 56, 256)
    s += ".p2align 6\n" + kd("k2_kernel", 160, 160)
    s += ".p2align 6\n" + kd("k3_kernel", 208, 208)
    open(out, "w").write(s)

if __name__ == "__main__":
    main(sys.argv[1] if len(sys.argv) > 1 and not sys.argv[1].startswith("-") else f"cdna_kernels/{NAME}.s")
```

```python
import sys
s = open(sys.argv[1]).read()
def mk(mode, name):
    t = s
    line = "; @launch kernel=kw_kernel grid=(256,1,1) block=(256,1,1) lds=0\n"
    t = t.replace("; @launch kernel=k1_kernel", line + "; @launch kernel=k1_kernel", 1)
    code = """.globl kw_kernel
.p2align 8
.type kw_kernel,@function
kw_kernel:
    s_cmp_ge_u32 s2, 256
    s_cbranch_scc1 KW_exit
    s_load_dwordx4 s[36:39], s[0:1], 0
    s_load_dwordx2 s[40:41], s[0:1], 16
    s_load_dwordx4 s[44:47], s[0:1], 32
    s_load_dwordx2 s[48:49], s[0:1], 48
    s_load_dwordx2 s[50:51], s[0:1], 72
    s_lshl_b32 s3, s2, 6
    v_and_b32 v1, 63, v0
    v_add_u32 v1, s3, v1
    v_lshlrev_b32 v1, 7, v1
    s_mov_b32 s7, 0x00020000
    s_waitcnt lgkmcnt(0)
"""
    if 'i' in mode:
        for lo, size in ((36, 2048*1024), (38, 512*3072), (44, 512*3584), (46, 512*3584), (48, 1792*1024), (40, 512*1024)):
            code += f"    s_mov_b32 s4, s{lo}\n    s_mov_b32 s5, s{lo+1}\n    s_mov_b32 s6, {size}\n    buffer_load_dword v2, v1, s[4:7], 0 offen\n"
    if 'c' in mode:
        code += "    s_getpc_b64 s[8:9]\nKW_pc:\n    s_sub_u32 s8, s8, KW_pc-k1_kernel\n    s_subb_u32 s9, s9, 0\n    v_lshlrev_b32 v3, 7, v0\n    v_min_u32 v3, KW_pc-k1_kernel, v3\n    global_load_dword v2, v3, s[8:9]\n"
    if 't' in mode:
        code += "    s_mov_b32 s4, s50\n    s_mov_b32 s5, s51\n    s_mov_b32 s6, 0x1600000\n    v_lshlrev_b32 v3, 17, v0\n    buffer_load_dword v2, v3, s[4:7], 0 offen\n"
    if 'w' in mode:
        code += "    s_waitcnt vmcnt(0)\n"
    code += "KW_exit:\n    s_endpgm\n"
    t = t.replace('.section .rodata,"a"', code + '.section .rodata,"a"')
    t += """.p2align 6
.amdhsa_kernel kw_kernel
  .amdhsa_next_free_vgpr 8
  .amdhsa_next_free_sgpr 64
  .amdhsa_accum_offset 8
  .amdhsa_group_segment_fixed_size 0
  .amdhsa_kernarg_size 80
  .amdhsa_user_sgpr_count 2
  .amdhsa_user_sgpr_kernarg_segment_ptr 1
  .amdhsa_system_sgpr_workgroup_id_x 1
.end_amdhsa_kernel
"""
    open(name, "w").write(t)
for m in ("n", "ict", "c", "i", "t"):
    mk(m, f"warm_{m}.s")
```
